```python
import torch

def _softmax(x, axis=-1):
    return torch.softmax(x, dim=axis)
def _gelu(x):
    return torch.nn.functional.gelu(x, approximate="tanh")
def _silu(x):
    return torch.nn.functional.silu(x)
def _sigmoid(x):
    return torch.sigmoid(x)
def _layernorm(x, axis=-1, eps=1e-5):
    m = x.mean(dim=axis, keepdim=True)
    v = x.var(dim=axis, keepdim=True, unbiased=False)
    return (x - m) / torch.sqrt(v + eps)
def _scatter_add(tgt, idx, src, axis=0):
    return tgt.clone().index_add_(axis, idx, src)
def _segment_sum(src, seg, n):
    out = torch.zeros((n,) + src.shape[1:], dtype=src.dtype)
    return out.index_add_(0, seg, src)
def _pad(x, pw):
    flat = tuple(v for pair in reversed(pw) for v in pair)
    return torch.nn.functional.pad(x, flat)

kernel_name = 'gated_mix__sliding_block_cached__swiglu_ffn__decode'

def setup_inputs():

    _w = (lambda a: (lambda t: t.to(torch.bfloat16) if t.is_floating_point() else t)(torch.as_tensor(a)))
    def _A_setup():
        B, Sq, D = 8, 1, 576
        Hq, Hkv, Sk, Dh = 32, 16, 4096, 128
        assert Hq % Hkv == 0, (Hq, Hkv)
        return {
            "x": _w((lambda *s: torch.randn(*s, dtype=torch.bfloat16) * 0.05)(B, Sq, D)),
            "k_cache": _w((lambda *s: torch.randn(*s, dtype=torch.bfloat16) * 3.2)(B, Hkv, Sk, Dh)),
            "v_cache": _w((lambda *s: torch.randn(*s, dtype=torch.bfloat16) * 0.4)(B, Hkv, Sk, Dh)),
            "wq": _w((lambda *s: torch.randn(*s, dtype=torch.bfloat16) * 3.2)(D, Hq * Dh) * (D ** -0.5)),
            "wo": _w((lambda *s: torch.randn(*s, dtype=torch.bfloat16) * 0.4)(Hq * Dh, D) * ((Hq * Dh) ** -0.5)),
        }
    _A_in = _A_setup()

    def _B_setup():
        B, S, D, F = 8, 1, 576, 4608
        return {
            "x": _w((lambda *s: torch.randn(*s, dtype=torch.bfloat16) * 0.05)(B, S, D)),
            "w_gate": _w((lambda *s: torch.randn(*s, dtype=torch.bfloat16) * 0.05)(D, F)),
            "w_up": _w((lambda *s: torch.randn(*s, dtype=torch.bfloat16) * 0.05)(D, F)),
            "w_down": _w((lambda *s: torch.randn(*s, dtype=torch.bfloat16) * 0.05)(F, D)),
        }
    _B_in = _B_setup()

    return {
        "A_x": _A_in["x"],
        "A_k_cache": _A_in["k_cache"],
        "A_v_cache": _A_in["v_cache"],
        "A_wq": _A_in["wq"],
        "A_wo": _A_in["wo"],
        "B_x": _B_in["x"],
        "B_w_gate": _B_in["w_gate"],
        "B_w_up": _B_in["w_up"],
        "B_w_down": _B_in["w_down"],
        "gate_w": _w((lambda *s: torch.randn(*s, dtype=torch.bfloat16) * 0.05)(576) * 16.0),
    }

def reference(A_x, A_k_cache, A_v_cache, A_wq, A_wo, B_x, B_w_gate, B_w_up, B_w_down, gate_w):
    def _A_ref(x, k_cache, v_cache, wq, wo):
        B, Sq, D = x.shape
        Hq, Dh = 32, 128
        Hkv, Sk = k_cache.shape[1], k_cache.shape[2]
        W = min(4096, max(256, Sk // 4))
        rep = Hq // Hkv
        q = (lambda x, *d: x.permute(*d))((x @ wq).reshape(B, Sq, Hq, Dh), 0, 2, 1, 3)
        k = (lambda x, n, axis: torch.repeat_interleave(x, n, dim=axis))(k_cache[:, :, Sk - W:, :], rep, axis=1)
        v = (lambda x, n, axis: torch.repeat_interleave(x, n, dim=axis))(v_cache[:, :, Sk - W:, :], rep, axis=1)
        scores = torch.einsum("bhqd,bhkd->bhqk", q, k) * (Dh ** -0.5)
        p = _softmax(scores, axis=-1)
        o = torch.einsum("bhqk,bhkd->bhqd", p, v)
        return (lambda x, *d: x.permute(*d))(o, 0, 2, 1, 3).reshape(B, Sq, Hq * Dh) @ wo

    def _B_ref(x, w_gate, w_up, w_down):
        g = _silu(x @ w_gate)
        u = x @ w_up
        return (g * u) @ w_down

    x = A_x
    g = _sigmoid((x * gate_w).sum(-1, keepdims=True))
    a = _A_ref(x, A_k_cache, A_v_cache, A_wq, A_wo)
    b = _B_ref(x, B_w_gate, B_w_up, B_w_down)
    return g * a + (1 - g) * b
```

```python
import sys, re
from asmlib import *

NAME = "gated_mix__sliding_block_cached__swiglu_ffn__decode_kernel"

class Cfg:
    kv_aux = "sc1 nt"
    w_aux = "sc1 nt"
    s1_aux = "sc1 nt"
    out_aux = ""
    stamps = 0
    dbg = 0
    wpos = 0
    wpos2 = 0
    nA = 32
    r3gu = 0
    wfirst = 0
    kst = 0
    thr = 0
    thr_from = 4
    thr1 = 0
    thr3 = 0
    order = 0
    krot = 0
    tlbw = 0
    stw = 0
    stwave = 3
    x_aux = ""
    r_aux = ""
    early = 0
    wth2 = 4
    layout = 0
    clead = 6
    wth = 6
    wmiss = 64
    at_aux = "sc0"
    dwait = 1
    D = 10
    spin_max = 1 << 12
    sleep = 2
    stag = 0
    rstag = 0
    rsleep = 2
    r2w = 16
    stag_early = 1
    rsplit = 1
    rpre = 0
    map = "rot2"
    r2gu = 0
    wbar = 1
    wdelay = 0
    slowcls = 3
    mbox = 0
    kd_every = 2
    exp_every = 2

SLOT = 8192
TILE_OFF, PART_OFF = 2048, 4096
MB_BASE = 0x220000
CNT_BASE = 0x200000
OBW = 384
OBP = 4 * OBW
OBH = 16 * OBP
WS_SIZE = MB_BASE + 16 * OBH
LDS = 32768

def gen(cfg):
    a = Asm()
    def stamp(i, tail=False):
        if cfg.stamps == 1 and not tail or cfg.stamps == 2 and (tail or i in (0, 5, 6, 7)):
            a(f"s_memrealtime s[{68+2*i}:{69+2*i}]")
    def stampval(i, sreg):
        if cfg.stamps == 2:
            a(f"s_mul_i32 s{68+2*i}, {sreg}, 100")
            a(f"s_add_u32 s{68+2*i}, s{68+2*i}, s68")
            a(f"s_addc_u32 s{69+2*i}, s69, 0")
    def newlabel(p):
        a.nlabel += 1
        return f"L_{p}{a.nlabel}"
    sWave = "s3"
    SK, SV, SWS, SX, SW2, SOUT, SS1 = "s[44:47]", "s[48:51]", "s[52:55]", "s[56:59]", "s[60:63]", "s[64:67]", "s[96:99]"
    sP = "s4"
    sT0, sT1, sT2, sT3 = "s5", "s6", "s7", "s8"
    sLo, sHi = "s9", "s10"
    sOff = "s11"
    sStride = "s12"; sOffW = "s13"
    sRole = "s14"
    sC = "s15"
    sTag = "s84"; sSpin = "s85"
    sU0, sU1, sU2, sU3, sU4, sU5 = "s86", "s87", "s88", "s89", "s90", "s91"
    sQ = "s92"; sGU = "s93"; sOffK = "s94"; sOffV = "s95"
    sS4 = "s42"; sHalf = "s43"
    sCnt = "s42"; sRank = "s43"
    sN = "s95"
    sPS = "s100"
    sMB = "s101"
    vLane, vG, vL16 = 1, 2, 3
    vKoff, vVoff, vXoff = 4, 5, 6
    vTag = 7
    vS1off = 8; vGUoff = 9; vQoff = 10; vW2off = 11
    vT = 12
    vQ = 20
    vAcc = 28
    vM, vL, vMc = 32, 33, 34
    vLdsW, vLdsR = 35, 36
    vGoff = 38; vGate = 39; vCl = 37
    vMask = 40
    vX = 44
    vOw, vOr, vOs, vPo = 44, 45, 46, 47
    vH = 48
    vTA = 56
    vD = 72
    vS = 104
    vDK = 144
    vB = 168
    vGa = 176
    vW = 184
    vW2 = 192
    vGU2 = vTA
    R4 = 18432; R2 = 19456; R3 = 24576
    D = cfg.D
    def rotexpr(r):
        if cfg.krot == 0: return f"s_mov_b32 {r}, 0"
        if cfg.krot == 1: return f"s_bfe_u32 {r}, s2, 0x40003\ns_lshl_b32 {r}, {r}, 12"
        if cfg.krot == 2: return f"s_mul_i32 {r}, s2, 5\ns_and_b32 {r}, {r}, 15\ns_lshl_b32 {r}, {r}, 12"
        if cfg.krot == 3: return f"s_mul_i32 {r}, s2, 13\ns_lshr_b32 {r}, {r}, 2\ns_and_b32 {r}, {r}, 15\ns_lshl_b32 {r}, {r}, 12"

    vm = []
    def issue(tag): vm.append(tag)
    def waitfor(tag):
        idx = max(i for i, t in enumerate(vm) if t == tag)
        n = len(vm) - 1 - idx
        a(f"s_waitcnt vmcnt({min(n, 63)})")
    def tagcheck(regs, acc):
        for i, r in enumerate(regs):
            if i == 0:
                a(f"v_xor_b32 v{acc}, {sTag}, v{r}")
            else:
                a(f"v_bitop3_b32 v{acc}, v{r}, {sTag}, v{acc} bitop3:0xbe")
    def compact(r):
        a(f"v_mov_b32 v{r+1}, v{r+2}")
        a(f"v_mov_b32 v{r+2}, v{r+4}")
        a(f"v_mov_b32 v{r+3}, v{r+6}")
    def kreg(i): return 4*i
    def vreg(i, n):
        if n <= 32: return 128 + 4*i
        nfirst = (256 - 4*n) // 4
        return 4*n + 4*i if i < nfirst else 4*(i - nfirst)

    a(f"""
s_cmp_ge_u32 s2, 256
s_cbranch_scc1 L_end
s_load_dwordx16 s[16:31], s[0:1], 0
s_load_dwordx8 s[32:39], s[0:1], 64
s_load_dwordx2 s[40:41], s[0:1], 96
""")
    stamp(0)
    a(f"""
v_lshrrev_b32 v{vT}, 6, v0
v_and_b32 v{vLane}, 63, v0
v_readfirstlane_b32 {sWave}, v{vT}
v_lshrrev_b32 v{vG}, 4, v{vLane}
v_and_b32 v{vL16}, 15, v{vLane}
s_mov_b32 {sLo}, 0x05040100
s_mov_b32 {sHi}, 0x07060302
s_mov_b32 {sC}, 0x3e0293ee
v_lshlrev_b32 v{vVoff}, 4, v0
v_and_b32 v{vT+1}, 3, v{vLane}
v_lshlrev_b32 v{vKoff}, 4, v{vT+1}
v_lshl_add_u32 v{vKoff}, v{vG}, 6, v{vKoff}
v_bfe_u32 v{vT+1}, v{vLane}, 2, 2
v_lshl_add_u32 v{vKoff}, v{vT+1}, 8, v{vKoff}
v_lshl_add_u32 v{vKoff}, v{vT}, 10, v{vKoff}
; role
s_mov_b32 {sRole}, 0
s_cmp_ge_u32 s2, 208
s_cselect_b32 {sRole}, 3, {sRole}
""")
    if cfg.map == "norm":
        a(f"s_lshr_b32 {sP}, s2, 1\ns_and_b32 {sHalf}, s2, 1")
    elif cfg.map == "hi":
        a(f"s_and_b32 {sP}, s2, 127\ns_lshr_b32 {sHalf}, s2, 7")
    elif cfg.map == "rot":
        a(f"""s_lshr_b32 {sP}, s2, 1
s_bfe_u32 {sT0}, s2, 0x20003
s_xor_b32 {sP}, {sP}, {sT0}
s_lshr_b32 {sHalf}, s2, 5
s_xor_b32 {sHalf}, {sHalf}, s2
s_and_b32 {sHalf}, {sHalf}, 1""")
    elif cfg.map == "rot2":
        a(f"""s_lshr_b32 {sP}, s2, 1
s_bfe_u32 {sT0}, s2, 0x30005
s_xor_b32 {sP}, {sP}, {sT0}
s_lshr_b32 {sHalf}, s2, 3
s_xor_b32 {sHalf}, {sHalf}, s2
s_and_b32 {sHalf}, {sHalf}, 1""")
    a(f"""
; lots: C3 tile WGs (w%8==3, w<208) nA, their partners 64-nA
s_mov_b32 {sN}, 32
s_and_b32 {sT0}, s2, 7
s_cmp_eq_u32 {sT0}, 3
s_cselect_b32 {sN}, {cfg.nA}, {sN}
s_cmp_eq_u32 {sT0}, 2
s_cselect_b32 {sN}, {64-cfg.nA}, {sN}
s_cmp_ge_u32 s2, 208
s_cselect_b32 {sN}, 32, {sN}
s_sub_u32 {sU5}, 64, {sN}
s_mul_i32 {sU5}, {sU5}, {sHalf}
s_lshl_b32 {sU5}, {sU5}, 12
s_lshl_b32 {sU4}, {sN}, 12
s_lshl_b32 {sU3}, {sP}, 20
s_add_u32 {sU3}, {sU3}, {sU5}
s_add_u32 {sU3}, {sU3}, 0xC0000
s_mov_b32 s46, {sU4}
s_mov_b32 s47, 0x20000
s_mov_b32 s50, {sU4}
s_mov_b32 s51, 0x20000
s_mov_b32 s54, {WS_SIZE}
s_mov_b32 s55, 0x20000
s_mov_b32 s58, 9216
s_mov_b32 s59, 0x20000
s_mov_b32 s63, 0x20000
s_mov_b32 s99, 0x20000
; lane part of weight-tile row offset factor: rows = kh*32 + g*8 (kh = bit3 of lane), col chunk c8 = l%8
v_bfe_u32 v{vT}, v{vLane}, 3, 1
v_lshlrev_b32 v{vT}, 5, v{vT}
v_lshl_add_u32 v{vT+4}, v{vG}, 3, v{vT}
v_and_b32 v{vT+5}, 7, v{vLane}
v_lshlrev_b32 v{vT+5}, 4, v{vT+5}
v_mul_u32_u24 v{vW2off}, 1152, v{vT+4}
v_add_u32 v{vW2off}, v{vW2off}, v{vT+5}
v_and_b32 v{vT}, 7, v{vLane}
v_mul_u32_u24 v{vXoff}, 1152, v{vT}
v_bfe_u32 v{vT}, v{vLane}, 3, 1
v_lshl_add_u32 v{vXoff}, v{vT}, 6, v{vXoff}
v_lshl_add_u32 v{vXoff}, v{vG}, 4, v{vXoff}
s_cmp_lt_u32 s2, 64
s_movk_i32 {sStride}, 9216
s_mov_b32 {sT3}, 5308416
s_cselect_b32 {sStride}, 8192, {sStride}
s_cselect_b32 {sT2}, 0, 64
s_cselect_b32 {sT3}, 4718592, {sT3}
s_cmp_ge_u32 s2, 136
s_cselect_b32 {sT2}, 136, {sT2}
s_sub_u32 {sT2}, s2, {sT2}
s_lshl_b32 {sT2}, {sT2}, 7
s_sub_u32 s98, {sT3}, {sT2}
v_mul_lo_u32 v{vS1off}, v{vT+4}, {sStride}
v_add_u32 v{vS1off}, v{vS1off}, v{vT+5}
s_lshl_b32 {sS4}, {sStride}, 6
s_mul_i32 {sU0}, {sS4}, {sWave}
s_mul_i32 {sU2}, {sWave}, 73728
{rotexpr(sOffK)}
s_cmp_ge_u32 s2, 208
s_waitcnt lgkmcnt(0)
{"s_memtime s[26:27]" if cfg.dbg else ""}
{"s_memrealtime s[0:1]" if cfg.dbg else ""}
{"s_memrealtime s[72:73]" if cfg.kst else ""}
s_cbranch_scc1 L_nos1
s_cmp_lt_u32 s2, 136
s_cselect_b32 {sT0}, s28, s30
s_cselect_b32 {sT1}, s29, s31
s_cmp_lt_u32 s2, 64
s_cselect_b32 {sT0}, s22, {sT0}
s_cselect_b32 {sT1}, s23, {sT1}
s_add_u32 s96, {sT0}, {sT2}
s_addc_u32 s97, {sT1}, 0
s_and_b32 s97, s97, 0xffff
s_mov_b32 s56, s16
s_and_b32 s57, s17, 0xffff
s_mov_b32 s52, s40
s_and_b32 s53, s41, 0xffff
s_and_b32 {sT0}, s2, 0xc3
s_or_b32 {sT0}, {sT0}, {sWave}
s_cmp_eq_u32 {sT0}, 0
s_cbranch_scc0 L_noinit
s_lshl_b32 {sT0}, s2, 6
s_add_u32 {sT0}, {sT0}, {CNT_BASE}
v_mov_b32 v{vT}, 0
s_mov_b64 exec, 1
buffer_store_dword v{vT}, off, {SWS}, {sT0} sc1
s_mov_b64 exec, -1
L_noinit:
""")
    def srd_rest():
        a(f"""
s_load_dword {sTag}, s[40:41], 0
s_mov_b32 s52, s40
s_and_b32 s53, s41, 0xffff
s_add_u32 s44, s18, {sU3}
s_addc_u32 s45, s19, 0
s_and_b32 s45, s45, 0xffff
s_add_u32 s48, s20, {sU3}
s_addc_u32 s49, s21, 0
s_and_b32 s49, s49, 0xffff
""")
        if cfg.stw:
            lt = newlabel("notouch")
            a(f"s_cmp_eq_u32 {sWave}, {cfg.stwave}")
            a(f"s_cbranch_scc0 {lt}")
            if cfg.stw & 1:
                a(f"s_load_dword s26, s[20:21], {sU3}")
            if cfg.stw & 2:
                a("s_load_dword s26, s[36:37], 0")
                a("s_load_dword s26, s[34:35], 0")
            if cfg.stw & 4:
                for off in (0, 0x180000, 0x300000, 0x47ff00):
                    a(f"s_mov_b32 {sT0}, {off}")
                    a(f"s_load_dword s26, s[24:25], {sT0}")
            if cfg.stw & 8:
                for off in (0, 0x180000, 0x300000, 0x50ff00):
                    a(f"s_mov_b32 {sT0}, {off}")
                    a(f"s_load_dword s26, s[32:33], {sT0}")
            if cfg.stw & 16:
                a(f"s_mov_b32 {sT0}, {MB_BASE}")
                a(f"s_load_dword s26, s[40:41], {sT0}")
            a(f"{lt}:")
        if cfg.tlbw:
            a(f"""
s_mov_b32 s60, s24
s_and_b32 s61, s25, 0xffff
s_mov_b32 s62, 4718592
s_bfe_u32 {sT0}, s2, 0x20003
s_mul_i32 {sT0}, {sT0}, 0x180000
s_mov_b32 {sT1}, 0x10000
s_mov_b32 {sT2}, {MB_BASE}
s_mov_b64 exec, 1
buffer_load_dword v{vQ}, off, {SV}, 0
""")
            issue("T")
            if cfg.tlbw >= 2:
                a(f"buffer_load_dword v{vQ+1}, off, {SV}, {sT1}"); issue("T")
                a(f"buffer_load_dword v{vQ+2}, off, {SW2}, {sT0}"); issue("T")
                a(f"buffer_load_dword v{vQ+3}, off, {SWS}, {sT2} sc1"); issue("T")
            a("s_mov_b64 exec, -1")
    def w2_srd():
        a(f"""
s_sub_u32 {sT3}, s2, 175
s_add_u32 {sPS}, {sT3}, 145
s_mul_i32 {sT0}, {sT3}, 57
s_lshr_b32 {sT0}, {sT0}, 9
s_mul_i32 {sT1}, {sT0}, 9
s_sub_u32 {sT1}, {sT3}, {sT1}
s_mov_b32 {sU1}, {sT0}
s_mul_i32 {sT2}, {sT0}, 589824
s_lshl_b32 {sT3}, {sT1}, 7
s_add_u32 {sT2}, {sT2}, {sT3}
s_add_u32 {sU2}, {sU2}, {sT2}
s_mov_b32 s60, s32
s_and_b32 s61, s33, 0xffff
s_mov_b32 s62, 5308416
s_lshl_b32 {sPS}, {sPS}, 13
s_add_u32 {sPS}, {sPS}, {PART_OFF}
""")
    def gu_base():
        a(f"""
s_lshl_b32 {sT0}, {sU1}, 3
s_add_u32 {sT0}, {sT0}, {sWave}
s_add_u32 {sT0}, {sT0}, 65
s_lshl_b32 {sT0}, {sT0}, 13
s_add_u32 {sGU}, {sT0}, {TILE_OFF}
""")
    def kload(i):
        r = kreg(i)
        if cfg.thr and i >= cfg.thr_from: a(f"s_waitcnt vmcnt({cfg.thr-1})")
        a(f"buffer_load_dwordx4 a[{r}:{r+3}], v{vKoff}, {SK}, {sOffK} offen {cfg.kv_aux}"); issue(f"K{i}")
        a(f"s_addk_i32 {sOffK}, 0x1000")
        if cfg.krot:
            a(f"s_cmp_eq_u32 {sOffK}, s46")
            a(f"s_cselect_b32 {sOffK}, 0, {sOffK}")
    def vload(i, n):
        r = vreg(i, n)
        a(f"buffer_load_dwordx4 a[{r}:{r+3}], v{vVoff}, {SV}, {sOffV} offen {cfg.kv_aux}"); issue(f"V{i}")
        a(f"s_addk_i32 {sOffV}, 0x1000")
        if cfg.krot:
            a(f"s_cmp_eq_u32 {sOffV}, s46")
            a(f"s_cselect_b32 {sOffV}, 0, {sOffV}")
    def s1_ops():
        ops = []
        def xop(tag, xreg, ximm, sh, n4):
            def f():
                a(f"s_lshl_b32 {sT3}, {sWave}, {sh}")
                a(f"buffer_load_dwordx4 v[{xreg}:{xreg+3}], v{vXoff}, {SX}, {sT3} offen offset:{ximm} {cfg.x_aux}" if n4 else
                  f"buffer_load_dword v{xreg}, v{vXoff}, {SX}, {sT3} offen offset:{ximm} {cfg.x_aux}")
                issue(tag)
            return f
        def wop(tag, reg, pre):
            def f():
                a(pre)
                if cfg.thr1 and len(vm) >= cfg.thr1: a(f"s_waitcnt vmcnt({cfg.thr1-1})")
                a(f"buffer_load_dwordx4 v[{reg}:{reg+3}], v{vS1off}, {SS1}, {sOffW} offen {cfg.s1_aux}"); issue(tag)
            return f
        adv = f"s_add_u32 {sOffW}, {sOffW}, {sStride}"
        ops.append(xop("A", vX, 0, 7, True))
        for j in range(8):
            ops.append(wop("A", vW+4*j, f"s_mov_b32 {sOffW}, {sU0}" if j == 0 else adv))
        ops.append(xop("B", vX+4, 512, 7, True))
        for j in range(8):
            ops.append(wop("B", vW+32+4*j, f"s_lshl_b32 {sT2}, {sS4}, 2\ns_add_u32 {sOffW}, {sU0}, {sT2}" if j == 0 else adv))
        ops.append(xop("C", vX+8, 1024, 2, False))
        ops.append(wop("C", vW+64, f"""s_lshl_b32 {sT2}, {sS4}, 3
s_lshl_b32 {sT3}, {sWave}, 1
s_mul_i32 {sT3}, {sT3}, {sStride}
s_add_u32 {sOffW}, {sT2}, {sT3}"""))
        ops.append(wop("C", vW+68, adv))
        if cfg.early:
            preB = f"s_lshl_b32 {sT2}, {sS4}, 2\ns_add_u32 {sOffW}, {sU0}, {sT2}"
            preC = f"""s_lshl_b32 {sT2}, {sS4}, 3
s_lshl_b32 {sT3}, {sWave}, 1
s_mul_i32 {sT3}, {sT3}, {sStride}
s_add_u32 {sOffW}, {sT2}, {sT3}"""
            ops = [wop("A", vW, f"s_mov_b32 {sOffW}, {sU0}"), wop("B", vW+32, preB), wop("C", vW+64, preC), "K0", xop("A", vX, 0, 7, True)]
            ops.append(wop("A", vW+4, f"s_add_u32 {sOffW}, {sU0}, {sStride}"))
            for j in range(2, 8): ops.append(wop("A", vW+4*j, adv))
            ops.append(xop("B", vX+4, 512, 7, True))
            ops.append(wop("B", vW+36, preB + "\n" + adv))
            for j in range(2, 8): ops.append(wop("B", vW+32+4*j, adv))
            ops.append(xop("C", vX+8, 1024, 2, False))
            ops.append(wop("C", vW+68, preC + "\n" + adv))
        return ops
    def consts(dyn):
        a(f"""
v_and_b32 v{vT}, 7, v{vLane}
v_and_b32 v{vT+1}, 1, v{vT}
v_cmp_eq_u32 vcc, 1, v{vT+1}
v_mov_b32 v{vT+2}, 0xffff
v_mov_b32 v{vT+3}, 0xffff0000
v_cndmask_b32 v{vT+2}, v{vT+2}, v{vT+3}, vcc
v_lshrrev_b32 v{vT}, 1, v{vT}
""")
        for r in range(4):
            a(f"v_cmp_eq_u32 vcc, {r}, v{vT}")
            a("s_nop 1")
            a(f"v_cndmask_b32 v{vMask+r}, 0, v{vT+2}, vcc")
        a(f"""
v_and_b32 v{vT}, 1, v{vG}
v_mul_u32_u24 v{vLdsW}, 1152, v{vT}
v_lshrrev_b32 v{vT}, 5, v{vLane}
v_lshl_add_u32 v{vLdsW}, v{vT}, 7, v{vLdsW}
v_and_b32 v{vT}, 7, v{vLane}
v_lshl_add_u32 v{vLdsW}, v{vT}, 4, v{vLdsW}
s_lshl_b32 {sT0}, {sWave}, 8
v_add_u32 v{vLdsW}, {sT0}, v{vLdsW}
; q addr lane part: (h*2 + g/2)*SLOT + (g%2)*128 + c'*32
v_bfe_u32 v{vT}, v{vLane}, 3, 1
v_lshlrev_b32 v{vT}, 1, v{vT}
v_lshrrev_b32 v{vT+1}, 1, v{vG}
v_add_u32 v{vT}, v{vT}, v{vT+1}
v_lshlrev_b32 v{vQoff}, 13, v{vT}
v_and_b32 v{vT}, 1, v{vG}
v_lshl_add_u32 v{vQoff}, v{vT}, 7, v{vQoff}
v_and_b32 v{vT}, 3, v{vLane}
v_lshl_add_u32 v{vQoff}, v{vT}, 5, v{vQoff}
s_and_b32 {sT1}, {sP}, 15
s_lshr_b32 {sT0}, {sP}, 4
s_mul_i32 {sMB}, {sT1}, {OBH}
s_lshl_b32 {sT2}, {sT0}, 1
s_add_u32 {sT2}, {sT2}, {sHalf}
s_mul_i32 {sT2}, {sT2}, {OBP}
s_add_u32 {sMB}, {sMB}, {sT2}
s_mul_i32 {sT2}, {sWave}, {OBW}
s_add_u32 {sMB}, {sMB}, {sT2}
s_add_u32 {sMB}, {sMB}, {MB_BASE}
s_lshl_b32 {sT1}, {sT1}, 2
s_add_u32 {sT1}, {sT1}, 1
s_lshl_b32 {sT1}, {sT1}, 13
s_lshl_b32 {sT0}, {sT0}, 8
s_add_u32 {sQ}, {sT0}, {sT1}
s_add_u32 {sQ}, {sQ}, {TILE_OFF}
v_lshlrev_b32 v{vGUoff}, 4, v{vLane}
s_and_b32 {sT0}, {sP}, 15
s_lshl_b32 {sT0}, {sT0}, 8
s_add_u32 {sCnt}, {sT0}, {CNT_BASE}
v_mov_b32 v{vCl}, 1
""")
        if not cfg.stw: tagfin()
        if not dyn: gu_base()
    def tagfin():
        a(f"""
s_waitcnt lgkmcnt(0)
s_mul_i32 {sTag}, {sTag}, 1664525
s_add_u32 {sTag}, {sTag}, 1013904223
v_mov_b32 v{vTag}, {sTag}
""")
    def P(wbase, q, half, tb):
        sel = sLo if half == 0 else sHi
        for t in range(4):
            a(f"v_perm_b32 v{tb+4*half+t}, v{wbase+4*(2*t+1)+q}, v{wbase+4*(2*t)+q}, {sel}")
    def block_mfma(wbase, xb, first):
        def M(e):
            q = e // 2; tb = vTA + 8*(q % 2) + 4*(e % 2)
            c = "0" if first else f"v[{vD+4*e}:{vD+4*e+3}]"
            a(f"v_mfma_f32_16x16x32_bf16 v[{vD+4*e}:{vD+4*e+3}], v[{tb}:{tb+3}], v[{xb}:{xb+3}], {c}")
        P(wbase, 0, 0, vTA); P(wbase, 0, 1, vTA)
        for q in range(1, 4):
            tb = vTA + 8*(q % 2)
            P(wbase, q, 0, tb)
            M(2*(q-1)); M(2*(q-1)+1)
            P(wbase, q, 1, tb)
        a("s_nop 1")
        M(6); M(7)
    def xreduce_write():
        a("s_mov_b32 exec_lo, 0x00FF00FF")
        a("s_mov_b32 exec_hi, 0xFF00FF00")
        for e in range(8):
            a(f"ds_write_b128 v{vLdsW}, v[{vD+4*e}:{vD+4*e+3}] offset:{e*2304}")
        a("s_mov_b64 exec, -1")
        a("s_waitcnt lgkmcnt(0)")
        a("s_barrier")
    def sum8():
        for s in range(8):
            a(f"ds_read_b128 v[{vS+4*s}:{vS+4*s+3}], v{vLdsR} offset:{s*128}")
        for s in range(1, 8):
            a(f"s_waitcnt lgkmcnt({7-s})")
            for r in range(4):
                a(f"v_add_f32 v{vS+r}, v{vS+r}, v{vS+4*s+r}")
    def tagged_store8(src, dst, voff, soff, imm, d2=16):
        for r in range(4):
            a(f"v_mov_b32 v{dst+2*r}, v{src+r}")
            a(f"v_mov_b32 v{dst+2*r+1}, v{vTag}")
        a(f"buffer_store_dwordx4 v[{dst}:{dst+3}], v{voff}, {SWS}, {soff} offen offset:{imm} sc1")
        a(f"buffer_store_dwordx4 v[{dst+4}:{dst+7}], v{voff}, {SWS}, {soff} offen offset:{imm+d2} sc1")

    def s1_phase(sfx, n):
        vm.clear()
        st = {"nk": 0}
        def kn():
            if st["nk"] < n:
                kload(st["nk"]); st["nk"] += 1
        if cfg.early:
            for op in s1_ops():
                if op == "K0":
                    srd_rest()
                    if cfg.early >= 2: kn()
                else: op()
        else:
            for op in s1_ops(): op()
            srd_rest()
        kn()
        consts(True)
        waitfor("A")
        if cfg.kst: stamp(4)
        block_mfma(vW, vX, True)
        while len(vm) - 1 - max(i for i, t in enumerate(vm) if t == "B") < D: kn()
        waitfor("B"); block_mfma(vW+32, vX+4, False)
        while len(vm) - 1 - max(i for i, t in enumerate(vm) if t == "C") < D: kn()
        waitfor("C")
        for r in range(1, 4):
            a(f"v_mov_b32 v{vX+8+r}, 0")
        for r in range(16):
            if r % 4 != 0: a(f"v_mov_b32 v{vTA+r}, 0")
        wc = vW + 64
        for q in range(4):
            for half in range(2):
                e = 2*q + half
                tb = vTA + 4*(e % 4)
                sel = sLo if half == 0 else sHi
                a(f"v_perm_b32 v{tb}, v{wc+4+q}, v{wc+q}, {sel}")
                if e % 4 == 3:
                    a("s_nop 0")
                    for ee in range(e-3, e+1):
                        tb2 = vTA + 4*(ee % 4)
                        a(f"v_mfma_f32_16x16x32_bf16 v[{vD+4*ee}:{vD+4*ee+3}], v[{tb2}:{tb2+3}], v[{vX+8}:{vX+11}], v[{vD+4*ee}:{vD+4*ee+3}]")
        kn(); kn()
        if cfg.stw: tagfin()
        a("s_nop 4")
        xreduce_write()
        kn()
        a(f"""
s_cmp_ge_u32 {sWave}, 2
s_cbranch_scc1 L_s1_done{sfx}
v_lshrrev_b32 v{vT}, 2, v{vLane}
v_mul_u32_u24 v{vLdsR}, 1152, v{vT}
v_and_b32 v{vT+1}, 3, v{vLane}
v_lshl_add_u32 v{vLdsR}, v{vT+1}, 4, v{vLdsR}
s_lshl_b32 {sT0}, {sWave}, 6
v_add_u32 v{vLdsR}, {sT0}, v{vLdsR}
""")
        sum8()
        a(f"""
v_and_b32 v{vT}, 3, v{vLane}
v_lshlrev_b32 v{vT}, 7, v{vT}
v_bfe_u32 v{vT+1}, v{vLane}, 2, 1
v_lshl_add_u32 v{vT}, v{vT+1}, 6, v{vT}
v_lshrrev_b32 v{vT+1}, 3, v{vLane}
v_lshl_add_u32 v{vT}, v{vT+1}, 1, v{vT}
s_lshl_b32 {sT0}, {sWave}, 9
s_add_u32 {sT0}, {sT0}, {R4}
v_add_u32 v{vT}, {sT0}, v{vT}
v_cvt_pk_bf16_f32 v{vS+4}, v{vS}, v{vS+1}
v_cvt_pk_bf16_f32 v{vS+5}, v{vS+2}, v{vS+3}
s_nop 0
ds_write_b16 v{vT}, v{vS+4}
ds_write_b16_d16_hi v{vT}, v{vS+4} offset:16
ds_write_b16 v{vT}, v{vS+5} offset:32
ds_write_b16_d16_hi v{vT}, v{vS+5} offset:48
v_lshlrev_b32 v{vT+1}, 4, v{vLane}
v_add_u32 v{vT+1}, {sT0}, v{vT+1}
s_add_u32 {sT1}, s2, 1
s_lshl_b32 {sT1}, {sT1}, 13
s_waitcnt lgkmcnt(0)
ds_read_b128 v[{vS+8}:{vS+11}], v{vT+1}
s_cmp_lt_u32 s2, 64
s_cbranch_scc0 L_tile_gu{sfx}
s_lshl_b32 {sT0}, {sWave}, 10
s_add_u32 {sT0}, {sT0}, {sT1}
v_lshlrev_b32 v{vT+2}, 5, v{vLane}
s_waitcnt lgkmcnt(0)
s_mov_b32 exec_hi, 0
""")
        tagged_store8(vS+8, vS+16, vT+2, sT0, TILE_OFF)
        a(f"""
s_mov_b64 exec, -1
s_branch L_s1_done{sfx}
L_tile_gu{sfx}:
s_lshl_b32 {sT0}, {sWave}, 6
s_add_u32 {sT0}, {sT0}, {sT1}
v_and_b32 v{vT+2}, 3, v{vLane}
v_lshlrev_b32 v{vT+2}, 8, v{vT+2}
v_bfe_u32 v{vT+3}, v{vLane}, 2, 1
v_lshl_add_u32 v{vT+2}, v{vT+3}, 7, v{vT+2}
v_bfe_u32 v{vT+3}, v{vLane}, 3, 2
v_lshl_add_u32 v{vT+2}, v{vT+3}, 4, v{vT+2}
s_waitcnt lgkmcnt(0)
s_mov_b32 exec_hi, 0
""")
        tagged_store8(vS+8, vS+16, vT+2, sT0, TILE_OFF, d2=1024)
        a(f"""
s_mov_b64 exec, -1
L_s1_done{sfx}:
""")
        stamp(1)
        ns = sorted(set([cfg.nA, 32, 64 - cfg.nA]))
        assert st["nk"] <= ns[0]
        for nn in ns:
            while st["nk"] < nn:
                kload(st["nk"]); st["nk"] += 1
            if nn != ns[-1]:
                a(f"s_cmp_eq_u32 {sN}, {nn}")
                a(f"s_cbranch_scc1 L_seg2_{nn}")
            else:
                a(f"s_branch L_seg2_{nn}")

    s1_phase("", min(cfg.nA, 32))
    def w2load_op(j):
        blk, jj = j // 8, j % 8
        r = vW2 + 4*j
        if jj == 0 or jj == 4:
            a(f"s_add_u32 {sOffW}, {sU2}, {blk*4*73728 + (4608 if jj == 4 else 0)}")
        a(f"buffer_load_dwordx4 v[{r}:{r+3}], v{vW2off}, {SW2}, {sOffW} offen offset:{(jj%4)*1152} {cfg.w_aux}")
        issue(f"W{blk}")
    a("L_nos1:")
    vm.clear()
    srd_rest()
    w2_srd()
    for j in range(16):
        if cfg.thr3 and j >= cfg.thr3: a(f"s_waitcnt vmcnt({cfg.thr3-1})")
        w2load_op(j)
    kload(0)
    consts(False)
    for i in range(1, 32): kload(i)
    if cfg.stw: tagfin()
    stamp(1)

    def guload():
        for (reg, so) in ((vGa, 0), (vGa+8, 72*SLOT), (vGU2, 4*SLOT), (vGU2+8, 76*SLOT)):
            a(f"s_add_u32 {sT0}, {sGU}, {so}")
            a(f"buffer_load_dwordx4 v[{reg}:{reg+3}], v{vGUoff}, {SWS}, {sT0} offen sc1")
            a(f"buffer_load_dwordx4 v[{reg+4}:{reg+7}], v{vGUoff}, {SWS}, {sT0} offen offset:1024 sc1")
    def qload():
        a(f"buffer_load_dwordx4 v[{vQ}:{vQ+3}], v{vQoff}, {SWS}, {sQ} offen sc1")
        a(f"buffer_load_dwordx4 v[{vQ+4}:{vQ+7}], v{vQoff}, {SWS}, {sQ} offen offset:16 sc1")
    def rowreduce(reg, op):
        a(f"v_mov_b32 v{vT}, v{reg}")
        a("s_nop 1")
        a(f"v_permlane32_swap_b32 v{reg}, v{vT}")
        a("s_nop 1")
        a(f"{op} v{reg}, v{reg}, v{vT}")
        a(f"v_mov_b32 v{vT}, v{reg}")
        a("s_nop 1")
        a(f"v_permlane16_swap_b32 v{reg}, v{vT}")
        a("s_nop 1")
        a(f"{op} v{reg}, v{reg}, v{vT}")
    def silu_block(gr, ur, dst, tmp):
        for t in range(4):
            g0, g1, u0, u1 = tmp+4*t, tmp+4*t+1, tmp+4*t+2, tmp+4*t+3
            a(f"v_lshlrev_b32 v{g0}, 16, v{gr+2*t}")
            a(f"v_and_b32 v{g1}, 0xffff0000, v{gr+2*t}")
            a(f"v_lshlrev_b32 v{u0}, 16, v{ur+2*t}")
            a(f"v_and_b32 v{u1}, 0xffff0000, v{ur+2*t}")
        for t in range(4):
            g0, g1, u0, u1 = tmp+4*t, tmp+4*t+1, tmp+4*t+2, tmp+4*t+3
            a(f"v_mul_f32 v{u0}, v{u0}, v{g0}")
            a(f"v_mul_f32 v{u1}, v{u1}, v{g1}")
            a(f"v_mul_f32 v{g0}, 0xbfb8aa3b, v{g0}")
            a(f"v_mul_f32 v{g1}, 0xbfb8aa3b, v{g1}")
        for t in range(4):
            g0, g1 = tmp+4*t, tmp+4*t+1
            a(f"v_exp_f32 v{g0}, v{g0}")
            a(f"v_exp_f32 v{g1}, v{g1}")
        for t in range(4):
            g0, g1 = tmp+4*t, tmp+4*t+1
            a(f"v_add_f32 v{g0}, 1.0, v{g0}")
            a(f"v_add_f32 v{g1}, 1.0, v{g1}")
        for t in range(4):
            g0, g1 = tmp+4*t, tmp+4*t+1
            a(f"v_rcp_f32 v{g0}, v{g0}")
            a(f"v_rcp_f32 v{g1}, v{g1}")
        for t in range(4):
            g0, g1, u0, u1 = tmp+4*t, tmp+4*t+1, tmp+4*t+2, tmp+4*t+3
            a(f"v_mul_f32 v{u0}, v{u0}, v{g0}")
            a(f"v_mul_f32 v{u1}, v{u1}, v{g1}")
        for t in range(4):
            a(f"v_cvt_pk_bf16_f32 v{dst+t}, v{tmp+4*t+2}, v{tmp+4*t+3}")
    def silu_all():
        lc = newlabel("guchk"); lo = newlabel("guok")
        a(f"s_mov_b32 {sSpin}, 0")
        a(f"{lc}:")
        tagcheck([vGa+1+2*i for i in range(8)] + [vGU2+1+2*i for i in range(8)], vT)
        a(f"""
v_cmp_ne_u32 vcc, 0, v{vT}
s_cbranch_vccz {lo}
s_add_u32 {sSpin}, {sSpin}, 1
s_cmp_gt_u32 {sSpin}, {cfg.spin_max}
s_cbranch_scc1 {lo}
s_sleep {cfg.sleep}
""")
        guload()
        a(f"""
s_waitcnt vmcnt(0)
s_branch {lc}
{lo}:
""")
        silu_block(vGa, vGa+8, vH, vD)
        silu_block(vGU2, vGU2+8, vH+4, vD+16)
    def o_prep():
        a(f"""
v_bfe_u32 v{vT}, v{vLane}, 3, 1
v_mul_u32_u24 v{vOw}, 800, v{vT}
v_mul_u32_u24 v{vT}, 192, v{vG}
v_add_u32 v{vOw}, v{vOw}, v{vT}
v_and_b32 v{vT+1}, 7, v{vLane}
v_lshl_add_u32 v{vOw}, v{vT+1}, 2, v{vOw}
s_mul_i32 {sT0}, {sWave}, 1600
s_add_u32 {sT0}, {sT0}, {R3}
v_add_u32 v{vOw}, {sT0}, v{vOw}
; reader: wave v, l16 -> h = v>>1, dim = 64*(v&1) + 4*l16 : g = dim/32, rest = dim%32
v_lshrrev_b32 v{vT}, 3, v{vL16}
v_mul_u32_u24 v{vOr}, 192, v{vT}
v_and_b32 v{vT+1}, 7, v{vL16}
v_lshl_add_u32 v{vOr}, v{vT+1}, 4, v{vOr}
s_lshr_b32 {sT0}, {sWave}, 1
s_mul_i32 {sT0}, {sT0}, 800
s_and_b32 {sT1}, {sWave}, 1
s_mul_i32 {sT1}, {sT1}, 384
s_add_u32 {sT0}, {sT0}, {sT1}
s_add_u32 {sT0}, {sT0}, {R3}
v_add_u32 v{vOr}, {sT0}, v{vOr}
v_and_b32 v{vT}, 1, v{vL16}
v_lshlrev_b32 v{vOs}, 7, v{vT}
v_lshrrev_b32 v{vT}, 1, v{vL16}
v_lshl_add_u32 v{vOs}, v{vT}, 4, v{vOs}
v_and_b32 v{vT}, 7, v{vLane}
v_lshlrev_b32 v{vT}, 4, v{vT}
v_add_u32 v{vT}, 256, v{vT}
v_cmp_lt_u32 vcc, 15, v{vLane}
s_lshr_b32 {sT0}, {sWave}, 1
s_lshl_b32 {sT0}, {sT0}, 3
v_cndmask_b32 v{vOs}, v{vOs}, v{vT}, vcc
v_readlane_b32 {sT1}, v{vM}, {sT0}
s_nop 1
v_mov_b32 v{vMc}, {sT1}
v_mul_f32 v{vMc}, {sC}, v{vMc}
""")
    NOST = 1
    def o_publish(dyn):
        if dyn:
            lr = newlabel("norank")
            a(f"""
v_mov_b32 v{vT+1}, {R2+128}
s_cmp_eq_u32 {sWave}, 0
s_cbranch_scc0 {lr}
s_waitcnt vmcnt(0)
s_mov_b64 exec, 1
ds_write_b32 v{vT+1}, v{vCl}
s_mov_b64 exec, -1
{lr}:
""")
        a(f"""
s_lshr_b32 {sT0}, {sWave}, 1
s_lshl_b32 {sT0}, {sT0}, 4
s_add_u32 {sT1}, {sT0}, {R2}
v_mov_b32 v{vT+3}, {sT1}
v_mov_b32 v{vT+5}, v{vTag}
v_mov_b32 v{vT+7}, v{vTag}
s_nop 2
ds_write_b32 v{vOw}, v{vAcc}
ds_write_b32 v{vOw}, v{vAcc+1} offset:32
ds_write_b32 v{vOw}, v{vAcc+2} offset:64
ds_write_b32 v{vOw}, v{vAcc+3} offset:96
s_waitcnt lgkmcnt(0)
s_barrier
{f"ds_read_b32 v{vCl}, v{vT+1}" if dyn else ""}
ds_read_b128 v[{vD+16}:{vD+19}], v{vT+3} offset:32
ds_read_b128 v[{vD}:{vD+3}], v{vOr}
ds_read_b128 v[{vD+4}:{vD+7}], v{vOr} offset:1600
ds_read_b128 v[{vD+8}:{vD+11}], v{vOr} offset:3200
ds_read_b128 v[{vD+12}:{vD+15}], v{vOr} offset:4800
s_waitcnt lgkmcnt(4)
v_add_f32 v{vD+16}, v{vD+16}, v{vD+17}
v_add_f32 v{vD+18}, v{vD+18}, v{vD+19}
s_waitcnt lgkmcnt(2)
""")
        for r in range(4):
            a(f"v_add_f32 v{vD+r}, v{vD+r}, v{vD+4+r}")
        a(f"v_add_f32 v{vD+22}, v{vD+16}, v{vD+18}")
        a("s_waitcnt lgkmcnt(0)")
        for r in range(4):
            a(f"v_add_f32 v{vD+8+r}, v{vD+8+r}, v{vD+12+r}")
        for r in range(4):
            a(f"v_add_f32 v{vD+r}, v{vD+r}, v{vD+8+r}")
        a(f"""
v_cvt_pk_bf16_f32 v{vT+4}, v{vD}, v{vD+1}
v_cvt_pk_bf16_f32 v{vT+6}, v{vD+2}, v{vD+3}
s_mov_b64 exec, 0xff0000
v_mov_b32 v{vT+4}, v{vMc}
v_mov_b32 v{vT+6}, v{vD+22}
s_mov_b64 exec, 0xffffff
buffer_store_dwordx4 v[{vT+4}:{vT+7}], v{vOs}, {SWS}, {sMB} offen sc1
s_mov_b64 exec, -1
""")
    def perms(wbase, dst):
        for q in range(4):
            for half in range(2):
                P(wbase, q, half, dst + 8*q)
    def w2_prep():
        a(f"""
v_lshrrev_b32 v{vT}, 3, v{vLane}
s_lshl_b32 {sT0}, {sWave}, 3
v_add_u32 v{vT}, {sT0}, v{vT}
v_mul_u32_u24 v{vLdsR}, 1152, v{vT}
v_and_b32 v{vT+1}, 7, v{vLane}
v_lshl_add_u32 v{vLdsR}, v{vT+1}, 4, v{vLdsR}
v_lshlrev_b32 v{vPo}, 9, v{vT+1}
v_lshl_add_u32 v{vPo}, v{vT}, 4, v{vPo}
""")
    def w2_reduce_publish():
        a("s_nop 7")
        a("s_nop 0")
        xreduce_write()
        stamp(4, True)
        lbl = newlabel("w2pub")
        a(f"""
s_cmp_ge_u32 {sWave}, 2
s_cbranch_scc1 {lbl}
""")
        for r in range(4):
            a(f"v_mov_b32 v{vS+32+2*r+1}, v{vTag}")
        for s_ in range(8):
            a(f"ds_read_b128 v[{vS+4*s_}:{vS+4*s_+3}], v{vLdsR} offset:{s_*128}")
        for s_ in range(1, 7):
            a(f"s_waitcnt lgkmcnt({7-s_})")
            for r in range(4):
                a(f"v_add_f32 v{vS+r}, v{vS+r}, v{vS+4*s_+r}")
        a("s_waitcnt lgkmcnt(0)")
        for r in range(4):
            a(f"v_add_f32 v{vS+32+2*r}, v{vS+r}, v{vS+28+r}")
        a(f"buffer_store_dwordx4 v[{vS+32}:{vS+35}], v{vPo}, {SWS}, {sPS} offen offset:0 sc1")
        a(f"buffer_store_dwordx4 v[{vS+36}:{vS+39}], v{vPo}, {SWS}, {sPS} offen offset:256 sc1")
        a(f"{lbl}:")

    def seg2(n, roles):
        ng = (n + 3) // 4
        def gsz(grp): return min(4, n - 4*grp)
        a(f"L_seg2_{n}:")
        vm.clear()
        lg = newlabel("nogu")
        if 3 in roles and not cfg.r3gu:
            a(f"s_cmp_lt_u32 {sRole}, 3")
            a(f"s_cbranch_scc1 {lg}")
            guload()
            a(f"{lg}:")
        qload(); issue("Q"); issue("Q")
        a(rotexpr(sOffV))
        for i in range(D): vload(i, n)
        waitfor("Q")
        if not cfg.kst: stamp(2)
        lok = newlabel("qok"); lsp = newlabel("qspin")
        def qchk():
            tagcheck([vQ+1, vQ+3, vQ+5, vQ+7], vT)
            a(f"v_cmp_ne_u32 vcc, 0, v{vT}")
            a(f"s_cbranch_vccz {lok}")
        qchk()
        a(f"s_mov_b32 {sSpin}, 0")
        a(f"{lsp}:")
        qload()
        a("s_waitcnt vmcnt(0)")
        qchk()
        a(f"""
s_add_u32 {sSpin}, {sSpin}, 1
s_cmp_gt_u32 {sSpin}, {cfg.spin_max}
s_cbranch_scc1 {lok}
s_sleep {cfg.sleep}
s_branch {lsp}
{lok}:
""")
        compact(vQ)
        stamp(3)
        nv = D
        def KM(grp):
            for c in range(gsz(grp)):
                i = grp*4 + c
                d = vDK + 16*(grp % 2) + 4*c
                a(f"v_mfma_f32_16x16x32_bf16 v[{d}:{d+3}], a[{kreg(i)}:{kreg(i)+3}], v[{vQ}:{vQ+3}], 0")
        def KD(grp):
            for st in range(4):
                if gsz(grp) < 4 and st > 0: a("s_nop 0")
                for c in range(gsz(grp)):
                    i = grp*4 + c
                    d = vDK + 16*(grp % 2) + 4*c + st
                    qp = f"quad_perm:[{st},{st},{st},{st}] row_mask:0xf bank_mask:0xf"
                    if st == 0:
                        a(f"v_mov_b32_dpp v{vS+i}, v{d} {qp}")
                    else:
                        a(f"v_add_f32_dpp v{vS+i}, v{d}, v{vS+i} {qp}")
        vsafe = n if n <= 32 else (256 - 4*n) // 4
        a("s_nop 1")
        KM(0); KM(1)
        a("s_nop 3")
        for grp in range(ng):
            KD(grp)
            if grp + 2 < ng:
                KM(grp+2)
            if grp % cfg.kd_every == cfg.kd_every - 1 and nv < vsafe:
                vload(nv, n); nv += 1
        a(f"v_max3_f32 v{vM}, v{vS}, v{vS+1}, v{vS+2}")
        for i in range(3, n-1, 2):
            a(f"v_max3_f32 v{vM}, v{vM}, v{vS+i}, v{vS+i+1}")
        a(f"v_max_f32 v{vM}, v{vM}, v{vS+n-1}")
        rowreduce(vM, "v_max_f32")
        a(f"""
v_bfe_u32 v{vT+1}, v{vLane}, 3, 1
v_lshlrev_b32 v{vT+1}, 4, v{vT+1}
s_lshl_b32 {sT0}, {sWave}, 2
s_add_u32 {sT0}, {sT0}, {R2}
v_add_u32 v{vT+2}, {sT0}, v{vT+1}
v_add_u32 v{vT+3}, {R2}, v{vT+1}
s_mov_b64 exec, 0x101
ds_write_b32 v{vT+2}, v{vM}
s_mov_b64 exec, -1
s_waitcnt lgkmcnt(0)
s_barrier
ds_read_b128 v[{vT+4}:{vT+7}], v{vT+3}
""")
        if nv < n: vload(nv, n); nv += 1
        a(f"""
s_waitcnt lgkmcnt(0)
v_max3_f32 v{vM}, v{vT+4}, v{vT+5}, v{vT+6}
v_max_f32 v{vM}, v{vM}, v{vT+7}
v_mul_f32 v{vMc}, {sC}, v{vM}
v_mov_b32 v{vL}, 0
""")
        for grp in range(ng):
            for c in range(gsz(grp)):
                i = grp*4+c
                a(f"v_fma_f32 v{vS+i}, v{vS+i}, {sC}, -v{vMc}")
            for c in range(gsz(grp)):
                i = grp*4+c
                a(f"v_exp_f32 v{vS+i}, v{vS+i}")
            if gsz(grp) < 4: a("s_nop 1")
            for c in range(gsz(grp)):
                i = grp*4+c
                a(f"v_add_f32 v{vL}, v{vL}, v{vS+i}")
            for c in range(gsz(grp)):
                i = grp*4+c
                a(f"v_cvt_pk_bf16_f32 v{vS+i}, v{vS+i}, v{vS+i}")
            if grp % cfg.exp_every == cfg.exp_every - 1 and nv < min(n - 1, vsafe if False else n - 1):
                vload(nv, n); nv += 1
        rowreduce(vL, "v_add_f32")
        a(f"""
s_mov_b64 exec, 0x101
ds_write_b32 v{vT+2}, v{vL} offset:32
s_mov_b64 exec, -1
v_mov_b32 v{vAcc}, 0
v_mov_b32 v{vAcc+1}, 0
v_mov_b32 v{vAcc+2}, 0
v_mov_b32 v{vAcc+3}, 0
""")
        if not cfg.kst: stamp(4)
        vm0 = list(vm); nv0 = nv
        if 3 in roles:
            a(f"s_cmp_eq_u32 {sRole}, 3")
            a(f"s_cbranch_scc1 L_pv_{n}_3")
        for r in roles:
            if n == 32 and r == 3: a(";@CHUNK pv3")
            a(f"L_pv_{n}_{r}:")
            vm[:] = list(vm0)
            silu = r == 3 and not cfg.r3gu
            def AND(i):
                for q in range(4):
                    a(f"v_and_b32 v{vB+4*(i%2)+q}, v{vS+i}, v{vMask+q}")
            AND(0)
            nv = nv0
            claimed = False
            for i in range(n):
                if r == 0 and not claimed and nv >= n - cfg.clead:
                    lc = newlabel("noclaim")
                    a(f"""
s_cmp_eq_u32 {sWave}, 0
s_cbranch_scc0 {lc}
s_mov_b64 exec, 1
buffer_atomic_add v{vCl}, off, {SWS}, {sCnt} {cfg.at_aux}
s_mov_b64 exec, -1
{lc}:
""")
                    claimed = True
                if nv < n:
                    vload(nv, n); nv += 1
                    if nv == n and r == 3 and cfg.r3gu:
                        guload()
                        for _ in range(8): issue("G")
                if silu and i == max(n - nv0 + 1, 2): silu_all()
                if i == n - 8: o_prep()
                if i + 1 < n: AND(i+1)
                else: a("s_nop 1")
                waitfor(f"V{i}")
                b = vB + 4*(i % 2)
                vr = vreg(i, n)
                a(f"v_mfma_f32_16x16x32_bf16 v[{vAcc}:{vAcc+3}], a[{vr}:{vr+3}], v[{b}:{b+3}], v[{vAcc}:{vAcc+3}]")
            assert nv == n and (r != 0 or claimed)
            stamp(5)
            o_publish(r == 0)
            stamp(6)
            if not (cfg.layout and n == 32 and r == 0): a(f"s_branch L_tail_{r}")
    seg2(32, [0, 3])
    a(";@CHUNK segx")
    if cfg.nA != 32:
        seg2(cfg.nA, [0])
        seg2(64 - cfg.nA, [0])

    a(";@CHUNK disp")
    a(f"""
L_tail_0:
v_readfirstlane_b32 {sRank}, v{vCl}
s_and_b32 {sU1}, {sP}, 15
s_cmp_lt_u32 {sU1}, 8
s_cselect_b32 {sT0}, 3, 1
s_cmp_eq_u32 {sU1}, 0
s_cselect_b32 {sT0}, 4, {sT0}
""")
    if cfg.order:
        a(f"""
s_add_u32 {sT1}, {sRank}, {sT0}
s_sub_u32 {sT2}, {sRank}, 9
s_cmp_lt_u32 {sT2}, {sT0}
s_cselect_b32 {sT2}, {sT2}, {sRank}
s_cmp_lt_u32 {sRank}, 9
s_cselect_b32 {sRank}, {sT1}, {sT2}
""")
    a(f"""
s_cmp_lt_u32 {sRank}, {sT0}
s_cbranch_scc1 L_tail_2
s_sub_u32 {sT1}, {sRank}, {sT0}
s_cmp_lt_u32 {sT1}, 9
{"s_cbranch_scc0 L_tail_red" if cfg.layout else "s_cbranch_scc1 L_tail_wo"}
;@CHUNK red
L_tail_red:
s_cmp_eq_u32 {sU1}, 0
s_cselect_b32 {sT2}, 10, 11
s_cmp_ge_u32 {sT1}, {sT2}
s_cbranch_scc1 L_fin
; reducer rank: g == 0 ? 0 : 2g - 1 + (j - 9)
s_lshl_b32 {sT2}, {sU1}, 1
s_add_u32 {sT2}, {sT2}, {sT1}
s_sub_u32 {sT2}, {sT2}, 10
s_cmp_eq_u32 {sU1}, 0
s_cselect_b32 {sU1}, 0, {sT2}
s_branch L_reducer
;@CHUNK wd
L_tail_2:
s_mul_i32 {sT2}, {sU1}, 3
s_add_u32 {sT2}, {sT2}, 1
s_add_u32 {sT1}, {sU1}, 17
s_cmp_lt_u32 {sU1}, 8
s_cselect_b32 {sT2}, {sT2}, {sT1}
s_cmp_eq_u32 {sU1}, 0
s_cselect_b32 {sT2}, 0, {sT2}
s_add_u32 {sT3}, {sT2}, {sRank}
s_add_u32 {sPS}, {sT3}, 145
s_mul_i32 {sT0}, {sT3}, 57
s_lshr_b32 {sU1}, {sT0}, 9
s_mov_b32 {sRole}, 2
""")
    gu_base()
    guload()
    a(f"""
s_mul_i32 {sT1}, {sU1}, 9
s_sub_u32 {sT1}, {sT3}, {sT1}
s_mul_i32 {sT2}, {sU1}, 589824
s_lshl_b32 {sT3}, {sT1}, 7
s_add_u32 {sT2}, {sT2}, {sT3}
s_add_u32 {sU2}, {sU2}, {sT2}
s_mov_b32 s60, s32
s_and_b32 s61, s33, 0xffff
s_mov_b32 s62, 5308416
s_lshl_b32 {sPS}, {sPS}, 13
s_add_u32 {sPS}, {sPS}, {PART_OFF}
""")
    w2_prep()
    if cfg.dwait: a("s_waitcnt vmcnt(0)")
    for j in range(16): w2load_op(j)
    if not cfg.dwait: a("s_waitcnt vmcnt(16)")
    silu_all()
    a("s_waitcnt vmcnt(8)")
    perms(vW2, vDK)
    a("s_waitcnt vmcnt(0)")
    perms(vW2+32, vS)
    a("L_big_mfma:")
    a("s_nop 1")
    for e in range(8):
        a(f"v_mfma_f32_16x16x32_bf16 v[{vD+4*e}:{vD+4*e+3}], v[{vDK+4*e}:{vDK+4*e+3}], v[{vH}:{vH+3}], 0")
    for e in range(8):
        a(f"v_mfma_f32_16x16x32_bf16 v[{vD+4*e}:{vD+4*e+3}], v[{vS+4*e}:{vS+4*e+3}], v[{vH+4}:{vH+7}], v[{vD+4*e}:{vD+4*e+3}]")
    w2_reduce_publish()
    stamp(7)
    a(f"""
s_cmp_eq_u32 {sRole}, 2
s_cbranch_scc1 L_fin
s_cmp_ge_u32 s2, 249
s_cbranch_scc1 L_fin
s_sub_u32 {sU1}, s2, {208-31}
s_branch L_reducer
""")
    a(";@CHUNK t3")
    a("L_tail_3:")
    a(f"s_mov_b32 {sRank}, 99")
    if cfg.r3gu:
        a("s_waitcnt vmcnt(1)")
        silu_all()
    w2_prep()
    perms(vW2, vDK)
    perms(vW2+32, vS)
    a("s_branch L_big_mfma")
    a(";@CHUNK wo")
    a("L_tail_wo:")
    sets = [(vGa, vTA), (224, 240)]
    vSo = vT + 4
    a(f"""
v_and_b32 v{vT}, 7, v{vLane}
v_mul_u32_u24 v{vGoff}, {2*OBP}, v{vT}
v_add_u32 v{vSo}, 256, v{vGoff}
v_bfe_u32 v{vT}, v{vLane}, 3, 1
v_lshl_add_u32 v{vGoff}, v{vT}, 6, v{vGoff}
v_lshl_add_u32 v{vGoff}, v{vG}, 4, v{vGoff}
s_mul_i32 {sT0}, {sU1}, {OBH}
s_add_u32 {sT0}, {sT0}, {MB_BASE}
s_mul_i32 {sT3}, {sWave}, {OBW}
s_add_u32 {sU3}, {sT0}, {sT3}
""")
    def oload(k):
        G, St = sets[k]
        a(f"buffer_load_dwordx4 v[{G}:{G+3}], v{vGoff}, {SWS}, {sU3} offen sc1")
        a(f"buffer_load_dwordx4 v[{G+4}:{G+7}], v{vGoff}, {SWS}, {sU3} offen offset:128 sc1")
        a(f"buffer_load_dwordx4 v[{G+8}:{G+11}], v{vGoff}, {SWS}, {sU3} offen offset:{OBP} sc1")
        a(f"buffer_load_dwordx4 v[{G+12}:{G+15}], v{vGoff}, {SWS}, {sU3} offen offset:{OBP+128} sc1")
        a(f"buffer_load_dwordx4 v[{St}:{St+3}], v{vSo}, {SWS}, {sU3} offen sc1")
        a(f"buffer_load_dwordx4 v[{St+4}:{St+7}], v{vSo}, {SWS}, {sU3} offen offset:{OBP} sc1")
    if not cfg.wfirst: oload(0)
    a(f"""
s_mul_i32 {sT2}, {sU1}, 294912
s_lshl_b32 {sT3}, {sT1}, 7
s_add_u32 {sT2}, {sT2}, {sT3}
s_add_u32 {sU2}, {sU2}, {sT2}
s_mov_b32 s60, s24
s_and_b32 s61, s25, 0xffff
s_mov_b32 s62, 4718592
s_mul_i32 {sT0}, {sU1}, 9
s_add_u32 {sPS}, {sT0}, {sT1}
s_add_u32 {sPS}, {sPS}, 1
s_lshl_b32 {sPS}, {sPS}, 13
s_add_u32 {sPS}, {sPS}, {PART_OFF}
s_mov_b32 {sSpin}, 0
""")
    if not cfg.wfirst:
        a(f"s_cmp_ge_u32 {sT1}, {cfg.wth}")
        a("s_cbranch_scc0 L_wo_early")
    G, St = sets[0]
    tagregs = [G+1+2*i for i in range(8)] + [St+1, St+3, St+5, St+7]
    if cfg.wfirst == 1:
        for j in range(8): w2load_op(j)
        w2_prep()
        a("s_waitcnt vmcnt(0)")
        stamp(3, True)
        oload(0)
        perms(vW2, vDK)
        if cfg.stag:
            a(f"s_sleep {cfg.stag}")
            oload(1)
        stamp(1, True)
    if cfg.wfirst == 2:
        for j in range(8): w2load_op(j)
        oload(0)
        w2_prep()
        a("s_waitcnt vmcnt(6)")
        stamp(3, True)
        perms(vW2, vDK)
        stamp(1, True)
        a("s_branch L_o_chk0")
    if cfg.wfirst == 3:
        for j in range(8): w2load_op(j)
        a(f"s_cmp_ge_u32 {sT1}, {cfg.wth2}")
        a("s_cbranch_scc0 L_wf_early")
        oload(0)
        w2_prep()
        a("s_waitcnt vmcnt(6)")
        stamp(3, True)
        perms(vW2, vDK)
        stamp(1, True)
        a("s_branch L_o_chk0")
        a("L_wf_early:")
        w2_prep()
        a("s_waitcnt vmcnt(0)")
        stamp(3, True)
        oload(0)
        perms(vW2, vDK)
        stamp(1, True)
        a("s_branch L_o_chk0")
    def old_paths():
        for j in range(8): w2load_op(j)
        w2_prep()
        a("s_waitcnt vmcnt(8)")
        stamp(1, True)
        tagcheck(tagregs, vT)
        a(f"v_cmp_ne_u32 vcc, 0, v{vT}")
        a("s_branch L_wo_common")
        a("L_wo_early:")
        w2_prep()
        a("L_wo_epoll:")
        a("s_waitcnt vmcnt(0)")
        stamp(1, True)
        tagcheck(tagregs, vT)
        a(f"v_cmp_ne_u32 vcc, 0, v{vT}")
        if cfg.wmiss < 64:
            a(f"""
s_bcnt1_i32_b64 {sT0}, vcc
s_cmp_le_u32 {sT0}, {cfg.wmiss}
s_cbranch_scc1 L_wo_issue
s_add_u32 {sSpin}, {sSpin}, 1
s_cmp_gt_u32 {sSpin}, {cfg.spin_max}
s_cbranch_scc1 L_wo_issue
s_mov_b64 exec, vcc
""")
            if cfg.sleep: a(f"s_sleep {cfg.sleep}")
            oload(0)
            a("s_mov_b64 exec, -1")
            a("s_branch L_wo_epoll")
            a("L_wo_issue:")
        for j in range(8): w2load_op(j)
        a(f"""
L_wo_common:
s_cbranch_vccnz L_o_first_fail
s_waitcnt vmcnt(0)
""")
        stamp(3, True)
        perms(vW2, vDK)
        a(f"""
s_branch L_o_ok0
L_o_first_fail:
s_mov_b64 exec, vcc
""")
        oload(0)
        a("s_mov_b64 exec, -1")
        a("s_waitcnt vmcnt(6)")
        stamp(3, True)
        perms(vW2, vDK)
    if not cfg.wfirst: old_paths()
    a("L_o_chk0:")
    a("L_o_chk:")
    nset = 2 if cfg.stag else 1
    for k in range(nset):
        G, St = sets[k]
        a(f"s_waitcnt vmcnt({6 if cfg.stag else 0})")
        tagcheck([G+1+2*i for i in range(8)] + [St+1, St+3, St+5, St+7], vT)
        a(f"""
v_cmp_ne_u32 vcc, 0, v{vT}
s_cbranch_vccz L_o_ok{k}
s_mov_b64 exec, vcc
""")
        if not cfg.stag and cfg.sleep: a(f"s_sleep {cfg.sleep}")
        oload(k)
        a("s_mov_b64 exec, -1")
    a(f"""
s_add_u32 {sSpin}, {sSpin}, 1
s_cmp_gt_u32 {sSpin}, {cfg.spin_max}
s_cbranch_scc0 L_o_chk
""")
    for k in range(nset-1, -1, -1):
        G, St = sets[k]
        a(f"""
L_o_ok{k}:
v_max_f32 v{vT}, v{St}, v{St+4}
v_sub_f32 v{vT+1}, v{St}, v{vT}
v_sub_f32 v{vT+2}, v{St+4}, v{vT}
v_exp_f32 v{vT+1}, v{vT+1}
v_exp_f32 v{vT+2}, v{vT+2}
""")
        def unpack(t):
            x0 = G + 2*t; x1 = G + 8 + 2*t
            lo0, hi0, lo1, hi1 = vS+4*t, vS+4*t+1, vS+4*t+2, vS+4*t+3
            a(f"v_lshlrev_b32 v{lo0}, 16, v{x0}")
            a(f"v_and_b32 v{hi0}, 0xffff0000, v{x0}")
            a(f"v_lshlrev_b32 v{lo1}, 16, v{x1}")
            a(f"v_and_b32 v{hi1}, 0xffff0000, v{x1}")
        unpack(0)
        a(f"v_mul_f32 v{vT+3}, v{vT+1}, v{St+2}")
        a(f"v_fmac_f32 v{vT+3}, v{vT+2}, v{St+6}")
        unpack(1)
        a(f"v_rcp_f32 v{vT+3}, v{vT+3}")
        unpack(2); unpack(3)
        a(f"v_mul_f32 v{vT+1}, v{vT+1}, v{vT+3}")
        a(f"v_mul_f32 v{vT+2}, v{vT+2}, v{vT+3}")
        a("s_nop 0")
        for t in range(4):
            lo0, hi0 = vS+4*t, vS+4*t+1
            a(f"v_mul_f32 v{lo0}, v{lo0}, v{vT+1}")
            a(f"v_mul_f32 v{hi0}, v{hi0}, v{vT+1}")
        for t in range(4):
            lo0, hi0, lo1, hi1 = vS+4*t, vS+4*t+1, vS+4*t+2, vS+4*t+3
            a(f"v_fmac_f32 v{lo0}, v{lo1}, v{vT+2}")
            a(f"v_fmac_f32 v{hi0}, v{hi1}, v{vT+2}")
        for t in range(4):
            a(f"v_cvt_pk_bf16_f32 v{vH+t}, v{vS+4*t}, v{vS+4*t+1}")
        if k > 0: a("s_branch L_o_mfma")
    a("L_o_mfma:")
    stamp(2, True)
    a("s_nop 1")
    for e in range(8):
        a(f"v_mfma_f32_16x16x32_bf16 v[{vD+4*e}:{vD+4*e+3}], v[{vDK+4*e}:{vDK+4*e+3}], v[{vH}:{vH+3}], 0")
    w2_reduce_publish()
    stamp(7)
    a("s_branch L_fin")
    a(";@CHUNK reducer")
    a("L_reducer:")
    a(f"""
s_mov_b32 {sRole}, {sU1}
s_and_b32 {sU2}, {sU1}, 7
s_lshr_b32 {sU1}, {sU1}, 3
s_mov_b32 s60, s34
s_and_b32 s61, s35, 0xffff
s_mov_b32 s62, 1152
s_mov_b32 s56, s16
s_and_b32 s57, s17, 0xffff
v_lshlrev_b32 v{vT}, 4, v{vLane}
s_mul_i32 {sT1}, {sU2}, 1152
s_add_u32 {sT2}, {sT1}, 1024
s_movk_i32 {sT3}, 1024
buffer_load_dwordx4 v[{vS}:{vS+3}], v{vT}, {SX}, {sT1} offen {cfg.r_aux}
buffer_load_dwordx4 v[{vS+4}:{vS+7}], v{vT}, {SW2}, 0 offen {cfg.r_aux}
""")
    for r in range(8, 16):
        a(f"v_mov_b32 v{vS+r}, 0")
    a(f"""
s_mov_b64 exec, 0xff
buffer_load_dwordx4 v[{vS+8}:{vS+11}], v{vT}, {SX}, {sT2} offen {cfg.r_aux}
buffer_load_dwordx4 v[{vS+12}:{vS+15}], v{vT}, {SW2}, {sT3} offen {cfg.r_aux}
s_mov_b64 exec, -1
v_mov_b32 v{vT+2}, 0
v_lshrrev_b32 v{vT+4}, 3, v{vLane}
v_mul_u32_u24 v{vGoff}, {9*SLOT}, v{vT+4}
v_and_b32 v{vT+5}, 7, v{vLane}
v_lshl_add_u32 v{vGoff}, v{vT+5}, 4, v{vGoff}
v_lshlrev_b32 v{vOw}, 4, v{vT+5}
s_add_u32 {sT0}, {sU1}, 1
s_lshl_b32 {sT0}, {sT0}, 13
s_lshl_b32 {sT1}, {sU2}, 9
s_add_u32 {sU3}, {sT0}, {sT1}
s_lshl_b32 {sT1}, {sWave}, 7
s_add_u32 {sU3}, {sU3}, {sT1}
s_add_u32 {sU3}, {sU3}, {PART_OFF}
s_add_u32 {sU4}, {sU3}, {72*SLOT}
s_add_u32 {sU5}, {sU3}, {144*SLOT}
s_add_u32 {sU0}, {sU3}, {216*SLOT}
v_and_b32 v{vOr}, 1, v{vLane}
v_lshlrev_b32 v{vOr}, 6, v{vOr}
v_bfe_u32 v{vT+4}, v{vLane}, 1, 2
v_lshl_add_u32 v{vOr}, v{vT+4}, 1, v{vOr}
s_lshr_b32 {sT0}, {sWave}, 1
s_lshl_b32 {sT0}, {sT0}, 5
s_and_b32 {sT1}, {sWave}, 1
s_lshl_b32 {sT1}, {sT1}, 3
s_add_u32 {sT0}, {sT0}, {sT1}
s_mul_i32 {sT1}, {sU2}, 1152
s_add_u32 {sT0}, {sT0}, {sT1}
s_lshl_b32 {sT1}, {sU1}, 7
s_add_u32 {sOffW}, {sT0}, {sT1}
s_mov_b32 s64, s36
s_and_b32 s65, s37, 0xffff
s_mov_b32 s66, 9216
s_mov_b32 s67, 0x20000
s_waitcnt vmcnt(0)
""")
    for r in range(4):
        a(f"v_dot2_f32_bf16 v{vT+2}, v{vS+r}, v{vS+4+r}, v{vT+2}")
        a(f"v_dot2_f32_bf16 v{vT+2}, v{vS+8+r}, v{vS+12+r}, v{vT+2}")
    a("s_nop 3")
    for sh in (1, 2, 4, 8):
        a(f"v_add_f32_dpp v{vT+2}, v{vT+2}, v{vT+2} row_ror:{sh} row_mask:0xf bank_mask:0xf")
        a("s_nop 1")
    rowreduce(vT+2, "v_add_f32")
    a(f"""
v_mul_f32 v{vT+2}, 0xbfb8aa3b, v{vT+2}
v_exp_f32 v{vT+2}, v{vT+2}
s_nop 0
v_add_f32 v{vT+2}, 1.0, v{vT+2}
v_rcp_f32 v{vGate}, v{vT+2}
s_mov_b32 {sSpin}, 0
""")
    psets = [vD, vD+16]
    def rload(k):
        vP = psets[k]
        a(f"buffer_load_dwordx4 v[{vP}:{vP+3}], v{vGoff}, {SWS}, {sU3} offen sc1")
        a(f"buffer_load_dwordx4 v[{vP+4}:{vP+7}], v{vGoff}, {SWS}, {sU4} offen sc1")
        a(f"buffer_load_dwordx4 v[{vP+8}:{vP+11}], v{vGoff}, {SWS}, {sU5} offen sc1")
        a(f"buffer_load_dwordx4 v[{vP+12}:{vP+15}], v{vOw}, {SWS}, {sU0} offen sc1")
    stamp(1, True)
    vP = psets[0]
    rl = [(vGoff, sU3), (vGoff, sU4), (vGoff, sU5), (vOw, sU0)]
    def rl1(t):
        a(f"buffer_load_dwordx4 v[{vP+4*t}:{vP+4*t+3}], v{rl[t][0]}, {SWS}, {rl[t][1]} offen sc1")
    if cfg.rpre: a(f"s_sleep {cfg.rpre}")
    rload(0)
    nset = 1
    a("L_r_poll:")
    a("s_waitcnt vmcnt(0)")
    a(f"s_mov_b32 {sT0}, 0")
    for t in range(4):
        lbl = newlabel("rsk")
        r0 = vP + 4*t
        a(f"v_xor_b32 v{vT}, {sTag}, v{r0+1}")
        a(f"v_bitop3_b32 v{vT}, v{r0+3}, {sTag}, v{vT} bitop3:0xbe")
        a(f"v_cmp_ne_u32 vcc, 0, v{vT}")
        a(f"s_cbranch_vccz {lbl}")
        if cfg.rsleep:
            l2 = newlabel("rsl")
            a(f"s_cmp_lg_u32 {sT0}, 0")
            a(f"s_cbranch_scc1 {l2}")
            a(f"s_sleep {cfg.rsleep}")
            a(f"{l2}:")
        a(f"s_mov_b64 exec, vcc")
        rl1(t)
        a("s_mov_b64 exec, -1")
        a(f"s_mov_b32 {sT0}, 1")
        a(f"{lbl}:")
    a(f"""
s_cmp_eq_u32 {sT0}, 0
s_cbranch_scc1 L_r_ok0
s_add_u32 {sSpin}, {sSpin}, 1
s_cmp_gt_u32 {sSpin}, {cfg.spin_max}
s_cbranch_scc0 L_r_poll
""")
    vF = vS
    for k in range(nset-1, -1, -1):
        vP = psets[k]
        a(f"L_r_ok{k}:")
        a(f"v_add_f32 v{vP}, v{vP}, v{vP+4}")
        a(f"v_add_f32 v{vP+2}, v{vP+2}, v{vP+6}")
        a("s_mov_b64 exec, 0xff")
        a(f"v_add_f32 v{vP+8}, v{vP+8}, v{vP+12}")
        a(f"v_add_f32 v{vP+10}, v{vP+10}, v{vP+14}")
        a("s_mov_b64 exec, -1")
        a(f"v_sub_f32 v{vP}, v{vP}, v{vP+8}")
        a(f"v_sub_f32 v{vP+2}, v{vP+2}, v{vP+10}")
        a(f"v_fma_f32 v{vF}, v{vP}, v{vGate}, v{vP+8}")
        a(f"v_fma_f32 v{vF+1}, v{vP+2}, v{vGate}, v{vP+10}")
        if k > 0: a("s_branch L_r_fin")
    a("L_r_fin:")
    stamp(2, True)
    stampval(3, sSpin)
    a(f"""
s_nop 0
v_add_f32_dpp v{vF}, v{vF}, v{vF} row_ror:8 row_mask:0xf bank_mask:0xf
v_add_f32_dpp v{vF+1}, v{vF+1}, v{vF+1} row_ror:8 row_mask:0xf bank_mask:0xf
""")
    for sw in ("v_permlane32_swap_b32", "v_permlane16_swap_b32"):
        a(f"v_mov_b32 v{vF+2}, v{vF}")
        a(f"v_mov_b32 v{vF+3}, v{vF+1}")
        a("s_nop 0")
        a(f"{sw} v{vF}, v{vF+2}")
        a(f"{sw} v{vF+1}, v{vF+3}")
        a("s_nop 0")
        a(f"v_add_f32 v{vF}, v{vF}, v{vF+2}")
        a(f"v_add_f32 v{vF+1}, v{vF+1}, v{vF+3}")
    a(f"""
v_cvt_pk_bf16_f32 v{vF+4}, v{vF}, v{vF+1}
s_mov_b64 exec, 0xff
buffer_store_short v{vF+4}, v{vOr}, {SOUT}, {sOffW} offen {cfg.out_aux}
buffer_store_short_d16_hi v{vF+4}, v{vOr}, {SOUT}, {sOffW} offen offset:16 {cfg.out_aux}
s_cmp_eq_u32 {sRole}, 0
s_cbranch_scc0 L_noepoch
s_cmp_eq_u32 {sWave}, 0
s_cbranch_scc0 L_noepoch
s_mov_b64 exec, 1
v_mov_b32 v{vT}, 0
buffer_store_dword v{vTag}, v{vT}, {SWS}, 0 offen {cfg.out_aux}
L_noepoch:
s_mov_b64 exec, -1
""")
    if cfg.stamps == 1:
        a("s_memrealtime s[82:83]")
    else:
        stamp(7)
    a("L_fin:")
    if cfg.stamps and cfg.dbg:
        a(f"""
s_waitcnt vmcnt(0)
s_memrealtime s[100:101]
s_memtime s[86:87]
s_waitcnt lgkmcnt(0)
s_cmp_eq_u32 {sWave}, 0
s_cbranch_scc0 L_end
v_mov_b32 v1, 0
s_mov_b64 exec, 1
s_not_b32 s5, s68
v_mov_b32 v4, s5
global_atomic_umax v1, v4, s[38:39] offset:0
v_mov_b32 v4, s100
global_atomic_umax v1, v4, s[38:39] offset:4
v_mov_b32 v4, s70
global_atomic_umax v1, v4, s[38:39] offset:8
v_mov_b32 v4, s74
global_atomic_umax v1, v4, s[38:39] offset:12
v_mov_b32 v4, s78
global_atomic_umax v1, v4, s[38:39] offset:16
v_mov_b32 v4, s82
global_atomic_umax v1, v4, s[38:39] offset:20
s_sub_u32 s5, s78, s68
v_mov_b32 v4, s5
global_atomic_add v1, v4, s[38:39] offset:24
v_mov_b32 v4, s68
global_atomic_umax v1, v4, s[38:39] offset:28
s_sub_u32 s5, s70, s68
v_mov_b32 v4, s5
global_atomic_add v1, v4, s[38:39] offset:40
s_sub_u32 s5, s74, s68
v_mov_b32 v4, s5
global_atomic_add v1, v4, s[38:39] offset:44
s_cmp_eq_u32 s2, 0
s_cbranch_scc0 L_end
s_sub_u32 s5, s86, s26
v_mov_b32 v4, s5
global_store_dword v1, v4, s[38:39] offset:32
s_sub_u32 s5, s100, s0
v_mov_b32 v4, s5
global_store_dword v1, v4, s[38:39] offset:36
s_branch L_end
""")
    elif cfg.stamps:
        a(f"""
s_waitcnt vmcnt(0)
s_memrealtime s[100:101]
s_waitcnt lgkmcnt(0)
s_cmp_eq_u32 {sWave}, 0
s_cbranch_scc0 L_end
s_lshl_b32 {sT0}, s2, 7
s_add_u32 s40, s40, {sT0}
s_addc_u32 s41, s41, 0
s_add_u32 s40, s40, 0x10000000
s_addc_u32 s41, s41, 0
v_mov_b32 v1, 0
s_mov_b64 exec, 1
""")
        for i in list(range(8)):
            a(f"v_mov_b32 v4, s{68+2*i}")
            a(f"v_mov_b32 v5, s{69+2*i}")
            a(f"global_store_dwordx2 v1, v[4:5], s[40:41] offset:{8*i}")
        a(f"v_mov_b32 v4, {sRank}")
        a(f"v_mov_b32 v5, 0")
        a(f"global_store_dwordx2 v1, v[4:5], s[40:41] offset:64")
        a(f"v_mov_b32 v4, s100")
        a(f"v_mov_b32 v5, s101")
        a(f"global_store_dwordx2 v1, v[4:5], s[40:41] offset:120")
    a("L_end:")
    a("s_endpgm")
    chunks = {}; order = []; cur = "head"; chunks[cur] = []; order.append(cur)
    for l in a.lines:
        if l.strip().startswith(";@CHUNK"):
            cur = l.split()[1]; chunks[cur] = []; order.append(cur)
        else: chunks[cur].append(l)
    if cfg.layout == 1:
        order = ["head", "disp", "wo", "pv3", "t3", "segx", "red", "wd", "reducer"]
    elif cfg.layout == 2:
        order = ["head", "disp", "wo", "red", "reducer_", "pv3", "t3", "segx", "wd"]
    assert sorted(order) == sorted(chunks.keys()), (order, list(chunks))
    return "\n".join("\n".join(chunks[c]) for c in order) + "\n"

if __name__ == "__main__":
    cfg = Cfg()
    out = "k15"
    for arg in sys.argv[1:]:
        if arg.startswith("out="): out = arg[4:]
        else:
            k, v = arg.split("=", 1)
            setattr(cfg, k, type(getattr(cfg, k))(v.replace('+', ' ')))
    body = gen(cfg)
    src = make_file([(NAME, body, 512, 102, 256)], [(NAME, 256, 256, LDS)])
    build(src, out)
    print("built", out, len(src))
```
